```python
import torch

def _softmax(x, axis=-1):
    return torch.softmax(x, dim=axis)
def _gelu(x):
    return torch.nn.functional.gelu(x, approximate="tanh")
def _silu(x):
    return torch.nn.functional.silu(x)
def _sigmoid(x):
    return torch.sigmoid(x)
def _layernorm(x, axis=-1, eps=1e-5):
    m = x.mean(dim=axis, keepdim=True)
    v = x.var(dim=axis, keepdim=True, unbiased=False)
    return (x - m) / torch.sqrt(v + eps)
def _scatter_add(tgt, idx, src, axis=0):
    return tgt.clone().index_add_(axis, idx, src)
def _segment_sum(src, seg, n):
    out = torch.zeros((n,) + src.shape[1:], dtype=src.dtype)
    return out.index_add_(0, seg, src)
def _pad(x, pw):
    flat = tuple(v for pair in reversed(pw) for v in pair)
    return torch.nn.functional.pad(x, flat)

kernel_name = 'sequential_preLN__mha_block_cached__geglu_ffn__decode'

def setup_inputs():

    _w = (lambda a: (lambda t: t.to(torch.bfloat16) if t.is_floating_point() else t)(torch.as_tensor(a)))
    def _A_setup():
        B, Sq, D = 2, 1, 640
        H, Sk, Dh = 32, 16384, 192
        return {
            "x": _w((lambda *s: torch.randn(*s, dtype=torch.bfloat16) * 0.05)(B, Sq, D)),
            "k_cache": _w((lambda *s: torch.randn(*s, dtype=torch.bfloat16) * 3.2)(B, H, Sk, Dh)),
            "v_cache": _w((lambda *s: torch.randn(*s, dtype=torch.bfloat16) * 0.4)(B, H, Sk, Dh)),
            "wq": _w((lambda *s: torch.randn(*s, dtype=torch.bfloat16) * 3.2)(D, H * Dh) * (D ** -0.5)),
            "wo": _w((lambda *s: torch.randn(*s, dtype=torch.bfloat16) * 0.4)(H * Dh, D) * ((H * Dh) ** -0.5)),
        }
    _A_in = _A_setup()

    def _B_setup():
        B, S, D, F = 2, 1, 640, 1536
        return {
            "x": _w((lambda *s: torch.randn(*s, dtype=torch.bfloat16) * 0.05)(B, S, D)),
            "w_gate": _w((lambda *s: torch.randn(*s, dtype=torch.bfloat16) * 0.05)(D, F)),
            "w_up": _w((lambda *s: torch.randn(*s, dtype=torch.bfloat16) * 0.05)(D, F)),
            "w_down": _w((lambda *s: torch.randn(*s, dtype=torch.bfloat16) * 0.05)(F, D)),
        }
    _B_in = _B_setup()

    return {
        "A_x": _A_in["x"],
        "A_k_cache": _A_in["k_cache"],
        "A_v_cache": _A_in["v_cache"],
        "A_wq": _A_in["wq"],
        "A_wo": _A_in["wo"],
        "B_x": _B_in["x"],
        "B_w_gate": _B_in["w_gate"],
        "B_w_up": _B_in["w_up"],
        "B_w_down": _B_in["w_down"],
    }

def reference(A_x, A_k_cache, A_v_cache, A_wq, A_wo, B_x, B_w_gate, B_w_up, B_w_down):
    def _A_ref(x, k_cache, v_cache, wq, wo):
        B, Sq, D = x.shape
        H, Dh = 32, 192
        q = (lambda x, *d: x.permute(*d))((x @ wq).reshape(B, Sq, H, Dh), 0, 2, 1, 3)
        scores = torch.einsum("bhqd,bhkd->bhqk", q, k_cache) * (Dh ** -0.5)
        p = _softmax(scores, axis=-1)
        o = torch.einsum("bhqk,bhkd->bhqd", p, v_cache)
        return (lambda x, *d: x.permute(*d))(o, 0, 2, 1, 3).reshape(B, Sq, H * Dh) @ wo

    def _B_ref(x, w_gate, w_up, w_down):
        return (_gelu(x @ w_gate) * (x @ w_up)) @ w_down

    x = A_x
    h = x + _A_ref(_layernorm(x, axis=-1), A_k_cache, A_v_cache, A_wq, A_wo)
    h2 = h + _B_ref(_layernorm(h, axis=-1), B_w_gate, B_w_up, B_w_down)
    return h2
```

```python
import re, struct

def f32(x):
    return "0x%08x" % struct.unpack("<I", struct.pack("<f", x))[0]

_REG = re.compile(r"^(-|abs\()?([vas])(\d+)\)?$|^(-|abs\()?([vas])\[(\d+):(\d+)\]\)?$")

def regs_of(op):
    op = op.strip()
    if op == "vcc":
        return [("s", 106), ("s", 107)]
    if op == "vcc_lo":
        return [("s", 106)]
    if op == "exec":
        return [("s", 126), ("s", 127)]
    if op == "m0":
        return [("s", 124)]
    m = _REG.match(op)
    if not m:
        return []
    if m.group(2):
        return [(m.group(2), int(m.group(3)))]
    return [(m.group(5), i) for i in range(int(m.group(6)), int(m.group(7)) + 1)]

def split_ops(s):
    out, depth, cur = [], 0, ""
    for ch in s:
        if ch in "[(":
            depth += 1
        if ch in "])":
            depth -= 1
        if ch == "," and depth == 0:
            out.append(cur.strip()); cur = ""
        else:
            cur += ch
    if cur.strip():
        out.append(cur.strip())
    return out

TRANS = ("v_exp_f32", "v_log_f32", "v_rcp_f32", "v_rsq_f32", "v_sqrt_f32", "v_sin_f32", "v_cos_f32", "v_rcp_iflag_f32")
DPP_MODS = ("quad_perm", "row_shl", "row_shr", "row_ror", "wave_shl", "wave_shr", "wave_rol", "wave_ror", "row_mirror", "row_half_mirror", "row_bcast", "row_newbcast")

class Ins:
    __slots__ = ("text", "op", "kind", "wr", "rd", "dpp_rd", "mfma_c", "mfma_ab", "lane_src", "store_data", "sgpr_vmem", "is_trans", "states", "lanesel", "wide")
    def __init__(self, text):
        self.text = text
        t = text.split(";")[0].strip()
        parts = t.split(None, 1)
        self.op = parts[0]
        rest = parts[1] if len(parts) > 1 else ""
        ops = split_ops(rest)
        mods = ""
        if ops:
            last = ops[-1].split(None, 1)
            ops[-1] = last[0]
            mods = last[1] if len(last) > 1 else ""
        op = self.op
        self.wr, self.rd, self.dpp_rd, self.mfma_c, self.mfma_ab = [], [], [], [], []
        self.lane_src, self.store_data, self.sgpr_vmem, self.lanesel = [], [], [], []
        self.is_trans = False
        self.wide = False
        self.states = 1
        R = [regs_of(o) for o in ops]
        if op.startswith("v_mfma"):
            self.kind = "mfma"
            self.wr = R[0]; self.mfma_ab = R[1] + R[2]; self.mfma_c = R[3]; self.rd = R[1] + R[2] + R[3]
        elif op.startswith("v_"):
            self.kind = "valu"
            base = op.replace("_e32", "").replace("_e64", "").replace("_dpp", "")
            self.is_trans = base in TRANS
            if base.startswith("v_cmp"):
                self.wr = R[0]; self.rd = sum(R[1:], [])
            elif base in ("v_readfirstlane_b32", "v_readlane_b32"):
                self.wr = R[0]; self.rd = sum(R[1:], []); self.lane_src = R[1]
                if len(R) > 2: self.lanesel = R[2]
            elif base == "v_writelane_b32":
                self.wr = R[0]; self.rd = R[0] + R[1]; self.lanesel = R[2]
            elif base in ("v_add_co_u32", "v_sub_co_u32", "v_addc_co_u32", "v_subb_co_u32", "v_subrev_co_u32"):
                self.wr = R[0] + R[1]; self.rd = sum(R[2:], [])
            elif base.startswith("v_permlane"):
                self.wr = R[0] + R[1]; self.rd = R[0] + R[1]; self.dpp_rd = R[0] + R[1]
            else:
                self.wr = R[0]; self.rd = sum(R[1:], [])
                if base in ("v_fmac_f32", "v_dot2c_f32_bf16"):
                    self.rd = self.rd + R[0]
                if any(m in mods for m in DPP_MODS):
                    self.dpp_rd = R[1]
                    self.rd = self.rd + R[0]
        elif op.startswith("buffer_") or op.startswith("global_"):
            self.kind = "vmem"
            if op in ("buffer_wbl2", "buffer_inv"):
                pass
            elif op.startswith("buffer_load"):
                self.wr = R[0]; self.rd = R[1]; self.sgpr_vmem = R[2] + R[3]
            elif op.startswith("buffer_store") or op.startswith("buffer_atomic"):
                self.rd = R[0] + R[1]; self.store_data = R[0]; self.sgpr_vmem = R[2] + R[3]
                self.wide = len(R[0]) >= 3
                if op.startswith("buffer_atomic") and "sc0" in mods:
                    self.wr = R[0]
            elif op.startswith("global_load"):
                self.wr = R[0]; self.rd = R[1]; self.sgpr_vmem = R[2]
            else:
                self.rd = R[0] + R[1]; self.store_data = R[1]; self.sgpr_vmem = R[2]; self.wide = len(R[1]) >= 3
        elif op.startswith("ds_"):
            self.kind = "ds"
            if op.startswith("ds_read") or op.startswith("ds_bpermute") or op.startswith("ds_swizzle") or op.startswith("ds_permute"):
                self.wr = R[0]; self.rd = sum(R[1:], [])
            else:
                self.rd = sum(R, [])
        elif op == "s_nop":
            self.kind = "nop"; self.states = int(ops[0], 0) + 1
        elif op.startswith("s_cbranch") or op in ("s_branch", "s_endpgm", "s_setpc_b64", "s_swappc_b64"):
            self.kind = "branch"
        elif op.startswith("s_"):
            self.kind = "salu"
            if op.startswith("s_cmp") or op in ("s_waitcnt", "s_barrier", "s_sleep", "s_setprio"):
                self.rd = sum(R, [])
            else:
                self.wr = R[0] if R else []; self.rd = sum(R[1:], [])
        else:
            raise ValueError("unknown instruction: " + text)

class Asm:
    def __init__(self):
        self.out = []
        self.pos = 0
        self.last = {}
        self.vq = []
        self.vub = 0
        self.dry = 0
        self.rec = None
        self.use = None
        self.ucount = 0
        self.maxv = 0; self.maxa = -1; self.maxs = 0

    def raw(self, t):
        if not self.dry:
            self.out.append(t)
    def comment(self, t):
        self.raw("    ; " + t)
    def label(self, name):
        self.raw(name + ":")
    def uniq(self, p):
        self.ucount += 1
        return f"{p}_{self.ucount}"

    def _need(self, ins):
        L = self.last
        need = 0
        def chk(kind, regs, n):
            nonlocal need
            for r in regs:
                p = L.get((kind, r))
                if p is not None:
                    need = max(need, n - (self.pos - p))
        vr = [r for r in ins.rd if r[0] in "va"]
        vw = [r for r in ins.wr if r[0] in "va"]
        sr = [r for r in ins.rd if r[0] == "s"]
        if ins.kind == "mfma":
            chk("valu_w", vr, 2)
            chk("trans_w", vr, 2)
            chk("mfma_w", ins.mfma_ab, 8)
            for r in ins.mfma_c:
                p = L.get(("mfma_w", r))
                if p is not None and L.get(("mfma_d", r)) != tuple(ins.mfma_c):
                    need = max(need, 6 - (self.pos - p))
            if tuple(ins.mfma_c) != tuple(ins.wr):
                chk("mfma_w", vw, 8)
        elif ins.kind == "valu":
            chk("mfma_w", vr + vw, 8)
            chk("mfma_c", vw, 3)
            chk("any_w", ins.dpp_rd, 2)
            chk("valu_sw", sr, 2)
            chk("valu_sw", ins.lanesel, 4)
            chk("valu_w", ins.lane_src, 1)
            chk("trans_w", vr, 1)
            chk("store_d", vw, 2)
        elif ins.kind in ("vmem", "ds"):
            chk("mfma_w", vr + vw, 8)
            chk("valu_sw", ins.sgpr_vmem, 5)
            chk("store_d", vw, 1)
            chk("trans_w", vr, 1)
        elif ins.kind == "salu":
            chk("valu_sw", sr, 1)
        elif ins.kind == "branch":
            for (k, r), p in L.items():
                n = {"valu_w": 2, "trans_w": 2, "mfma_w": 8, "mfma_c": 3, "any_w": 2, "valu_sw": 5, "store_d": 2}.get(k)
                if n is not None:
                    need = max(need, n - 1 - (self.pos - p))
        return need

    def I(self, text, tag=None):
        ins = Ins(text)
        if ins.kind == "vmem":
            if self.vub >= 63:
                self._emit(Ins("s_waitcnt vmcnt(62)"))
                self.vub = 62
            self.vq.append(tag)
            self.vub += 1
        self._emit(ins)

    def _emit(self, ins):
        need = self._need(ins)
        while need > 0:
            n = min(need, 16)
            self.raw(f"    s_nop {n-1}")
            self.pos += n
            need -= n
        self.raw("    " + ins.text)
        self.pos += ins.states
        L = self.last
        for r in ins.wr + ins.rd:
            if r[0] == "v": self.maxv = max(self.maxv, r[1])
            elif r[0] == "a": self.maxa = max(self.maxa, r[1])
            elif r[1] < 102: self.maxs = max(self.maxs, r[1])
        for r in ins.sgpr_vmem:
            if r[1] < 102: self.maxs = max(self.maxs, r[1])
        for r in ins.wr:
            for k in ("valu_w", "trans_w", "mfma_w", "mfma_d", "any_w", "valu_sw"):
                L.pop((k, r), None)
        if ins.kind == "mfma":
            for r in ins.wr:
                L[("mfma_w", r)] = self.pos; L[("mfma_d", r)] = tuple(ins.wr)
            for r in ins.mfma_c:
                L[("mfma_c", r)] = self.pos
        elif ins.kind == "valu":
            for r in ins.wr:
                if r[0] == "s":
                    L[("valu_sw", r)] = self.pos
                else:
                    L[("valu_w", r)] = self.pos; L[("any_w", r)] = self.pos
                    if ins.is_trans: L[("trans_w", r)] = self.pos
        if ins.wide:
            for r in ins.store_data:
                L[("store_d", r)] = self.pos

    def wait_vm(self, tag, lgkm=None):
        n = None
        for i in range(len(self.vq) - 1, -1, -1):
            if self.vq[i] == tag:
                n = len(self.vq) - 1 - i
                break
        if n is None:
            n = 63
        n = min(n, 63)
        if self.rec is not None:
            self.rec.append(n)
        if self.use is not None:
            n = self.use.pop(0)
        extra = f" lgkmcnt({lgkm})" if lgkm is not None else ""
        if n >= 63 or n >= self.vub and self.use is None and self.rec is None:
            if extra:
                self._emit(Ins("s_waitcnt" + extra))
            return
        self._emit(Ins(f"s_waitcnt vmcnt({n})" + extra))
        self.vub = min(self.vub, n)
    def wait_vm0(self, lgkm=None):
        extra = f" lgkmcnt({lgkm})" if lgkm is not None else ""
        self._emit(Ins("s_waitcnt vmcnt(0)" + extra))
        self.vub = 0
        self.vq = []
    def wait_lgkm(self, n=0):
        self._emit(Ins(f"s_waitcnt lgkmcnt({n})"))

    def loop(self, body):
        save = (list(self.vq), self.vub, dict(self.last), self.pos, self.ucount)
        self.dry += 1
        recs = []
        ubs = [self.vub]
        for _ in range(3):
            self.rec = []
            body()
            recs.append(self.rec)
            ubs.append(self.vub)
        self.rec = None
        self.dry -= 1
        endq = list(self.vq)
        self.vq, self.vub, self.last, self.pos, self.ucount = save
        self.vub = max(ubs)
        self.use = [min(x) for x in zip(*recs)]
        body()
        assert not self.use
        self.use = None
        self.vq = endq

    def text(self):
        return "\n".join(self.out) + "\n"
```

```python
import sys, math
from asmlib import Asm, f32

NAME = "sequential_preLN__mha_block_cached__geglu_ffn__decode"
HEADER = open("cdna_kernels/%s.s.ref" % NAME).read().split("; Override")[0]

WS_Q, WS_ST, WS_OACC, WS_AACC, WS_ACT, WS_TK, WS_S = 0x0, 0x10000, 0x20000, 0x60000, 0x64000, 0x66000, 0x100000
WS_SIZE = 0x300000
OOB = 0x7ff00000
KV_BYTES = 402653184
ITEM_B = 128 * 384
NITEMS = 8192
DB_Q, DB_K, DB_ERR = 0, 64, 128
LQ, LZ, LKS, LTK, LVP, LT = 0, 24576, 25088, 25728, 26624, 38912
LDS_SIZE = 47104 + 1024
SCALE = f32(192 ** -0.5)
LOG2E = f32(math.log2(math.e))

class Cfg:
    RK = 4
    RV = 2
    NS = 22
    NCLS = 4
    nt = "nt"
    spin_max = 1 << 14
    def __init__(self, **kw):
        for k, v in kw.items(): setattr(self, k, v)

class VA:
    def __init__(self, start=1):
        self.n = start
    def one(self):
        r = self.n; self.n += 1; return r
    def blk(self, k, al=2):
        self.n = (self.n + al - 1) // al * al
        r = self.n; self.n += k; return r

def v(r, n=1): return f"v{r}" if n == 1 else f"v[{r}:{r+n-1}]"
def a(r, n=1): return f"a{r}" if n == 1 else f"a[{r}:{r+n-1}]"
def s(r, n=1): return f"s{r}" if n == 1 else f"s[{r}:{r+n-1}]"
DPPM = "row_mask:0xf bank_mask:0xf"

S_K, S_V, S_WS, S_DB, S_T = 4, 8, 12, 40, 44
P_X, P_K, P_V, P_WQ, P_WO, P_BX, P_WG, P_WU, P_WD, P_OUT, P_DBG, P_WS = 16, 18, 20, 22, 24, 26, 28, 30, 32, 34, 36, 38
sW, sCur, sT0, sT1, sT2, sT3, sM, sL, sCnt, sKdone, sSeq, sTk, sSpin, sCls, sH384, sPar = range(48, 64)
sOdd, sVal, sL63, sP3, sP2, sLo32, sC0, sC1, sC2 = 64, 66, 68, 70, 72, 74, 76, 78, 80
sIdx = 82
sPermLo, sPermHi = 88, 89
sT4, sT5, sT6, sT7 = 90, 91, 92, 93

class Gen:
    def __init__(self, cfg, phases, kname):
        self.c = cfg; self.ph = phases; self.kname = kname
        self.A = Asm()
        self.ool = []
        al = VA(1)
        R = self.R = {}
        for n in ("lane Koff Voff Qsel Qbase M0 M1 M2 M3 ScW ScR ScG T0 StL ScL PW PR AtO KcO Kc Qa Tk0 Tk1 Tk2 Tk3 One").split():
            R[n] = al.one()
        R["Q"] = al.blk(24, 4)
        R["D"] = al.blk(16, 4)
        R["T"] = al.blk(20, 4)
        R["St"] = al.blk(16, 4)
        R["Sc"] = al.blk(8, 2)
        R["W1"] = al.blk(48, 4)
        R["W2"] = al.blk(96, 4)
        assert al.n <= 256, al.n
        self.nv = al.n

    def fused(self): return "fused" in self.ph

    def srd(self, base, ptr, size):
        I = self.A.I
        I(f"s_mov_b32 s{base}, s{ptr}"); I(f"s_mov_b32 s{base+1}, s{ptr+1}")
        I(f"s_mov_b32 s{base+2}, {size}"); I(f"s_mov_b32 s{base+3}, 0x20000")

    def wave_red(self, op, regs, skip2=False):
        I = self.A.I
        steps = ["quad_perm:[1,0,3,2] " + DPPM] + ([] if skip2 else ["quad_perm:[2,3,0,1] " + DPPM]) + \
                ["row_half_mirror " + DPPM, "row_mirror " + DPPM, "row_bcast:15 row_mask:0xa bank_mask:0xf", "row_bcast:31 row_mask:0xc bank_mask:0xf"]
        for st in steps:
            for r in regs:
                I(f"{op}_dpp v{r}, v{r}, v{r} {st}")

    def bf16r(self, dst, src):
        I = self.A.I
        I(f"v_cvt_pk_bf16_f32 v{dst}, v{src}, v{src}")
        I(f"v_and_b32 v{dst}, 0xffff0000, v{dst}")

    def spin_check(self, lbl_retry, lbl_done, code, sleep=1):
        I = self.A.I
        I(f"s_add_u32 s{sSpin}, s{sSpin}, 1")
        I(f"s_cmp_lt_u32 s{sSpin}, {self.c.spin_max}")
        if sleep: I(f"s_sleep {sleep}")
        I(f"s_cbranch_scc1 {lbl_retry}")
        T = self.R["T"]
        I(f"v_mov_b32 v{T}, {DB_ERR + 4*code}")
        I(f"buffer_atomic_add v{self.R['One']}, v{T}, s[{S_DB}:{S_DB+3}], 0 offen sc1")

    def setup(self):
        A, I, R = self.A, self.A.I, self.R
        I("s_cmp_ge_u32 s2, 256")
        I(f"s_cbranch_scc1 L_end_{self.kname}")
        I("s_load_dwordx16 s[16:31], s[0:1], 0")
        I("s_load_dwordx8 s[32:39], s[0:1], 64")
        L = R["lane"]; T = R["T"]
        I(f"v_and_b32 v{L}, 63, v0")
        I(f"v_lshrrev_b32 v{T}, 6, v0")
        I(f"v_readfirstlane_b32 s{sW}, v{T}")
        I(f"v_mov_b32 v{R['One']}, 1")
        I(f"s_mov_b32 s{sOdd}, 0xaaaaaaaa"); I(f"s_mov_b32 s{sOdd+1}, 0xaaaaaaaa")
        I(f"s_mov_b32 s{sVal}, 0x00ff00ff"); I(f"s_mov_b32 s{sVal+1}, 0xff00ff00")
        I(f"s_mov_b32 s{sL63}, 0"); I(f"s_mov_b32 s{sL63+1}, 0x80000000")
        I(f"s_mov_b32 s{sP3}, 0x88888888"); I(f"s_mov_b32 s{sP3+1}, 0x88888888")
        I(f"s_mov_b32 s{sP2}, 0x44444444"); I(f"s_mov_b32 s{sP2+1}, 0x44444444")
        I(f"s_mov_b32 s{sLo32}, -1"); I(f"s_mov_b32 s{sLo32+1}, 0")
        I(f"s_mov_b32 s{sPermLo}, 0x05040100"); I(f"s_mov_b32 s{sPermHi}, 0x07060302")
        I(f"s_mov_b32 s{sSpin}, 0")
        I(f"s_mul_i32 s{sT0}, s{sW}, 12288")
        I(f"v_bfe_u32 v{T}, v{L}, 2, 2")
        I(f"v_lshrrev_b32 v{T+1}, 4, v{L}")
        I(f"v_lshl_add_u32 v{T+2}, v{T}, 2, v{T+1}")
        I(f"v_mul_u32_u24 v{T+2}, 768, v{T+2}")
        I(f"v_and_b32 v{T+3}, 3, v{L}")
        I(f"v_lshlrev_b32 v{T+3}, 4, v{T+3}")
        I(f"v_add3_u32 v{R['Koff']}, v{T+2}, v{T+3}, s{sT0}")
        I(f"v_cmp_eq_u32 vcc, v{T}, v{T+1}")
        I(f"v_mov_b32 v{T+4}, {LZ}")
        I(f"v_cndmask_b32 v{R['Qsel']}, 0, 1, vcc")
        I(f"v_cndmask_b32 v{R['Qbase']}, v{T+4}, v{T+3}, vcc")
        I(f"v_lshrrev_b32 v{T+5}, 3, v{L}")
        I(f"v_mul_u32_u24 v{T+2}, 1536, v{T+5}")
        I(f"v_and_b32 v{T+6}, 7, v{L}")
        I(f"v_lshlrev_b32 v{T+7}, 4, v{T+6}")
        I(f"v_add3_u32 v{R['Voff']}, v{T+2}, v{T+7}, s{sT0}")
        I(f"v_mov_b32 v{T+8}, 0xffff")
        I(f"v_mov_b32 v{T+9}, 0xffff0000")
        I(f"v_cndmask_b32 v{T+8}, v{T+8}, v{T+9}, s[{sOdd}:{sOdd+1}]")
        I(f"v_lshrrev_b32 v{T+9}, 1, v{T+6}")
        for r in range(4):
            I(f"v_cmp_eq_u32 vcc, {r}, v{T+9}")
            I(f"v_cndmask_b32 v{R['M%d' % r]}, 0, v{T+8}, vcc")
        I(f"s_lshl_b32 s{sT1}, s{sW}, 6")
        I(f"s_add_u32 s{sT2}, s{sT1}, {LKS}")
        I(f"v_lshrrev_b32 v{T+8}, 2, v{L}")
        I(f"v_and_b32 v{T+9}, 1, v{L}")
        I(f"v_lshl_add_u32 v{T+8}, v{T+8}, 1, v{T+9}")
        I(f"v_lshl_add_u32 v{R['ScW']}, v{T+8}, 1, s{sT2}")
        I(f"v_add_u32 v{R['ScR']}, s{sT2}, v{T+3}")
        I(f"v_add_u32 v{T+8}, s{sT1}, v{T+3}")
        I(f"v_mov_b32 v{T+10}, {OOB}")
        I(f"v_cmp_gt_u32 vcc, 4, v{L}")
        I(f"v_cndmask_b32 v{R['ScG']}, v{T+10}, v{T+8}, vcc")
        I(f"v_cmp_eq_u32 vcc, 0, v0")
        I(f"v_cndmask_b32 v{R['T0']}, v{T+10}, 0, vcc")
        I(f"v_lshlrev_b32 v{R['StL']}, 4, v{L}")
        I(f"v_lshl_add_u32 v{R['ScL']}, v{T+5}, 3, s{sT1}")
        I(f"s_mul_i32 s{sT2}, s{sW}, 1536")
        I(f"s_add_u32 s{sT2}, s{sT2}, {LVP}")
        I(f"v_bfe_u32 v{T+8}, v{L}, 5, 1")
        I(f"v_mul_u32_u24 v{T+8}, 768, v{T+8}")
        I(f"v_bfe_u32 v{T+9}, v{L}, 4, 1")
        I(f"v_lshl_add_u32 v{T+9}, v{T+9}, 7, v{T+7}")
        I(f"v_add3_u32 v{R['PW']}, v{T+8}, v{T+9}, s{sT2}")
        I(f"v_lshrrev_b32 v{T+8}, 2, v0")
        I(f"v_mul_u32_u24 v{T+8}, 3, v{T+8}")
        I(f"v_and_b32 v{T+9}, 3, v0")
        I(f"v_min_u32 v{T+9}, 2, v{T+9}")
        I(f"v_add_u32 v{T+8}, v{T+8}, v{T+9}")
        I(f"v_and_b32 v{T+9}, 0xe0, v{T+8}")
        I(f"v_and_b32 v{T+11}, 7, v{T+8}")
        I(f"v_lshl_add_u32 v{T+9}, v{T+11}, 2, v{T+9}")
        I(f"v_bfe_u32 v{T+11}, v{T+8}, 3, 2")
        I(f"v_add_u32 v{T+9}, v{T+9}, v{T+11}")
        I(f"v_lshlrev_b32 v{T+9}, 2, v{T+9}")
        I(f"v_add_u32 v{R['PR']}, {LVP}, v{T+9}")
        I(f"v_lshlrev_b32 v{R['AtO']}, 2, v0")
        I(f"v_lshlrev_b32 v{T+8}, 2, v{L}")
        I(f"v_add_u32 v{T+8}, {DB_K}, v{T+8}")
        I(f"v_cmp_gt_u32 vcc, 8, v{L}")
        I(f"v_cndmask_b32 v{R['KcO']}, v{T+10}, v{T+8}, vcc")
        I(f"s_lshr_b32 s{sCls}, s2, 3")
        I(f"s_and_b32 s{sCls}, s{sCls}, {self.c.NCLS-1}")
        A.wait_lgkm(0)
        self.srd(S_K, P_K, KV_BYTES); self.srd(S_V, P_V, KV_BYTES)
        self.srd(S_WS, P_WS, WS_SIZE); self.srd(S_DB, P_DBG, 256)

    def init_ws(self):
        A, I, R = self.A, self.A.I, self.R
        T = R["T"]
        I(f"s_lshl_b32 s{sT0}, s2, 10")
        I(f"s_mov_b32 s{sT1}, {WS_OACC}"); I(f"s_mov_b32 s{sT2}, 256"); I(f"s_mov_b32 s{sT3}, 0")
        for w, base, lim, val in ((1, WS_AACC, 10, 0), (2, WS_ACT, 6, -1), (3, WS_TK, 1, 0)):
            I(f"s_cmp_eq_u32 s{sW}, {w}")
            I(f"s_cselect_b32 s{sT1}, {base}, s{sT1}")
            I(f"s_cselect_b32 s{sT2}, {lim}, s{sT2}")
            I(f"s_cselect_b32 s{sT3}, {val}, s{sT3}")
        I(f"s_add_u32 s{sT0}, s{sT0}, s{sT1}")
        I(f"s_cmp_lt_u32 s2, s{sT2}")
        I(f"s_cselect_b32 s{sT0}, s{sT0}, {OOB}")
        for i in range(4):
            I(f"v_mov_b32 v{T+i}, s{sT3}")
        I(f"buffer_store_dwordx4 {v(T,4)}, v{R['StL']}, s[{S_WS}:{S_WS+3}], s{sT0} offen sc1", tag="init")

    def init_lds(self):
        A, I, R = self.A, self.A.I, self.R
        T = R["T"]
        I(f"v_mov_b32 v{T+4}, 0")
        I(f"v_mov_b32 v{T+5}, 0")
        I(f"v_lshrrev_b32 v{T+6}, 1, v0")
        I(f"v_lshlrev_b32 v{T+6}, 2, v{T+6}")
        I(f"ds_write_b32 v{T+6}, v{T+4} offset:{LZ}")
        I(f"v_lshlrev_b32 v{T+6}, 3, v0")
        I(f"ds_write_b64 v{T+6}, {v(T+4,2)} offset:{LT+6144}")

    def k_loads(self, slot, soff):
        I, R = self.A.I, self.R
        for i in range(6):
            for u in range(2):
                r = slot * 48 + (i * 2 + u) * 4
                I(f"buffer_load_dwordx4 {a(r,4)}, v{R['Koff']}, s[{S_K}:{S_K+3}], s{soff} offen offset:{u*384+i*64} {self.c.nt}", tag=f"ld{slot}_{i*2+u}")

    def v_loads(self, slot):
        I, R = self.A.I, self.R
        ix = sIdx + slot
        I(f"s_mul_i32 s{sT0}, s{ix}, {ITEM_B}")
        I(f"s_lshr_b32 s{sT1}, s{ix}, 7")
        I(f"s_lshl_b32 s{sT1}, s{sT1}, 10")
        I(f"s_add_u32 s{sT1}, s{sT1}, {WS_ST}")
        I(f"s_lshl_b32 s{sT2}, s{ix}, 8")
        I(f"s_add_u32 s{sT2}, s{sT2}, {WS_S}")
        I(f"s_cmp_lt_u32 s{ix}, {NITEMS}")
        I(f"s_cselect_b32 s{sT0}, s{sT0}, {OOB}")
        I(f"s_cselect_b32 s{sT1}, s{sT1}, {OOB}")
        I(f"s_cselect_b32 s{sT2}, s{sT2}, {OOB}")
        I(f"buffer_load_dwordx4 {v(R['St']+4*slot,4)}, v{R['StL']}, s[{S_WS}:{S_WS+3}], s{sT1} offen sc1", tag=f"st{slot}")
        I(f"buffer_load_dwordx2 {v(R['Sc']+2*slot,2)}, v{R['ScL']}, s[{S_WS}:{S_WS+3}], s{sT2} offen sc1", tag=f"sc{slot}")
        for u in range(4):
            for l in range(3):
                r = slot * 48 + (u * 3 + l) * 4
                I(f"buffer_load_dwordx4 {a(r,4)}, v{R['Voff']}, s[{S_V}:{S_V+3}], s{sT0} offen offset:{u*384+l*128} {self.c.nt}", tag=f"ld{slot}_{u*3+l}")

    def k_prefetch(self):
        I = self.A.I
        I(f"s_mul_i32 s{sT0}, s2, {ITEM_B}")
        for sl in range(self.c.RK):
            self.k_loads(sl, sT0)
            if sl + 1 < self.c.RK:
                I(f"s_add_u32 s{sT0}, s{sT0}, {256*ITEM_B}")

    def layernorm(self, X):
        A, I, R = self.A, self.A.I, self.R
        T, D = R["T"], R["D"]
        for b in range(2):
            I(f"v_add_f32 v{T+2*b}, v{X[b][0]}, v{X[b][1]}")
        for b in range(2):
            I(f"v_add_f32 v{T+2*b}, v{T+2*b}, v{X[b][2]}")
        self.wave_red("v_add_f32", [T, T+2])
        I(f"v_readlane_b32 s{sT0}, v{T}, 63")
        I(f"v_readlane_b32 s{sT1}, v{T+2}, 63")
        I(f"v_mov_b32 v{T+4}, {f32(1/160)}")
        I(f"v_mul_f32 v{T+5}, s{sT0}, v{T+4}")
        I(f"v_mul_f32 v{T+6}, s{sT1}, v{T+4}")
        for b in range(2):
            for i in range(3):
                I(f"v_sub_f32 v{T+8+3*b+i}, v{X[b][i]}, v{T+5+b}")
        for b in range(2):
            I(f"v_cndmask_b32 v{T+8+3*b+2}, 0, v{T+8+3*b+2}, s[{sLo32}:{sLo32+1}]")
        for b in range(2):
            I(f"v_mul_f32 v{T+1+2*b}, v{T+8+3*b}, v{T+8+3*b}")
        for i in (1, 2):
            for b in range(2):
                I(f"v_fmac_f32 v{T+1+2*b}, v{T+8+3*b+i}, v{T+8+3*b+i}")
        self.wave_red("v_add_f32", [T+1, T+3])
        I(f"s_lshl_b32 s{sT0}, s{sW}, 4")
        I(f"v_mov_b32 v{T+4}, s{sT0}")
        I(f"s_mov_b64 exec, s[{sL63}:{sL63+1}]")
        I(f"ds_write_b128 v{T+4}, {v(T,4)} offset:{LT}")
        I("s_mov_b64 exec, -1")
        I(f"v_mov_b32 v{T+4}, 0")
        A.wait_lgkm(0)
        I("s_barrier")
        for w in range(4):
            I(f"ds_read_b128 {v(D+4*w,4)}, v{T+4} offset:{LT+16*w}")
        A.wait_lgkm(0)
        for b in range(2):
            o = 2 * b
            mean, m2, t = T + 8 + 4*b, T + 9 + 4*b, T + 10 + 4*b
            I(f"v_add_f32 v{mean}, v{D+o}, v{D+4+o}")
            I(f"v_add_f32 v{t}, v{D+8+o}, v{D+12+o}")
            I(f"v_add_f32 v{mean}, v{mean}, v{t}")
            I(f"v_mul_f32 v{mean}, {f32(1/640)}, v{mean}")
            I(f"v_add_f32 v{m2}, v{D+o+1}, v{D+4+o+1}")
            I(f"v_add_f32 v{t}, v{D+8+o+1}, v{D+12+o+1}")
            I(f"v_add_f32 v{m2}, v{m2}, v{t}")
            I(f"v_mov_b32 v{t+1}, 0")
            for w in range(4):
                I(f"v_mul_f32 v{t}, {f32(1/160)}, v{D+4*w+o}")
                I(f"v_sub_f32 v{t}, v{t}, v{mean}")
                I(f"v_fmac_f32 v{t+1}, v{t}, v{t}")
            I(f"v_mul_f32 v{t+1}, {f32(160.0)}, v{t+1}")
            I(f"v_add_f32 v{m2}, v{m2}, v{t+1}")
            I(f"v_mul_f32 v{m2}, {f32(1/640)}, v{m2}")
            self.bf16r(mean, mean)
            self.bf16r(m2, m2)
            I(f"v_add_f32 v{m2}, {f32(1e-5)}, v{m2}")
            self.bf16r(m2, m2)
            I(f"v_sqrt_f32 v{m2}, v{m2}")
            self.bf16r(m2, m2)
            I(f"v_rcp_f32 v{m2}, v{m2}")
            for i in range(3):
                x = X[b][i]
                I(f"v_sub_f32 v{x}, v{x}, v{mean}")
                self.bf16r(x, x)
                I(f"v_mul_f32 v{x}, v{x}, v{m2}")
                I(f"v_cvt_pk_bf16_f32 v{x}, v{x}, v{x}")

    def load_x(self, X, off):
        I, R = self.A.I, self.R
        self.srd(S_T, P_X, 2560)
        I(f"s_mul_i32 s{sT0}, s{sW}, 320")
        I(f"v_lshl_add_u32 v{off}, v{R['lane']}, 1, s{sT0}")
        I(f"v_mov_b32 v{off+1}, {OOB}")
        I(f"v_cndmask_b32 v{off+1}, v{off+1}, v{off}, s[{sLo32}:{sLo32+1}]")
        for b in range(2):
            for i in range(3):
                I(f"buffer_load_ushort v{X[b][i]}, v{off+(i==2)}, s[{S_T}:{S_T+3}], 0 offen offset:{b*1280+i*128}", tag="x")

    def q_loads(self):
        A, I, R = self.A, self.A.I, self.R
        T, St, W2 = R["T"], R["St"], R["W2"]
        X = [[St + 3*b + i for i in range(3)] for b in range(2)]
        self.load_x(X, T)
        self.srd(S_T, P_WQ, 640 * 12288)
        I(f"s_mul_i32 s{sT0}, s{sW}, {160*12288}")
        I(f"v_lshrrev_b32 v{T+2}, 3, v{R['lane']}")
        I(f"s_mov_b32 s{sT1}, {20*12288}")
        I(f"v_mul_lo_u32 v{T+2}, v{T+2}, s{sT1}")
        I(f"v_and_b32 v{T+3}, 7, v{R['lane']}")
        I(f"v_lshlrev_b32 v{T+3}, 4, v{T+3}")
        I(f"v_add3_u32 v{T+2}, v{T+2}, v{T+3}, s{sT0}")
        I(f"s_lshl_b32 s{sT0}, s2, 7")
        for st in range(20):
            I(f"buffer_load_dwordx4 {v(W2+4*st,4)}, v{T+2}, s[{S_T}:{S_T+3}], s{sT0} offen {self.c.nt}", tag=f"wq{st}")
            if st < 19: I(f"s_add_u32 s{sT0}, s{sT0}, 12288")

    def q_compute(self):
        A, I, R = self.A, self.A.I, self.R
        T, St, W2, D, Q, W1 = R["T"], R["St"], R["W2"], R["D"], R["Q"], R["W1"]
        L = R["lane"]
        X = [[St + 3*b + i for i in range(3)] for b in range(2)]
        A.wait_vm("x")
        for b in range(2):
            for i in range(3):
                I(f"v_lshlrev_b32 v{X[b][i]}, 16, v{X[b][i]}")
        self.layernorm(X)
        XD = LT + 64
        I(f"s_mul_i32 s{sT0}, s{sW}, 1280")
        I(f"v_lshl_add_u32 v{T}, v{L}, 2, s{sT0}")
        for b in range(2):
            for i in range(2):
                I(f"ds_write_b32 v{T}, v{X[b][i]} offset:{XD+b*640+i*256}")
        I(f"s_mov_b64 exec, s[{sLo32}:{sLo32+1}]")
        for b in range(2):
            I(f"ds_write_b32 v{T}, v{X[b][2]} offset:{XD+b*640+512}")
        I("s_mov_b64 exec, -1")
        I(f"v_lshrrev_b32 v{T+1}, 3, v{L}")
        I(f"v_mul_u32_u24 v{T+1}, 80, v{T+1}")
        I(f"v_add_u32 v{T+1}, s{sT0}, v{T+1}")
        A.wait_lgkm(0)
        for b in range(2):
            for i in range(5):
                I(f"ds_read_b128 {v(W1+20*b+4*i,4)}, v{T+1} offset:{XD+b*640+16*i}")
        A.wait_lgkm(0)
        k = 0
        for st in range(20):
            for b in range(2):
                B = Q + 4 * (k % 4); k += 1
                for r in range(4):
                    I(f"v_and_b32 v{B+r}, v{W1+20*b+st}, v{R['M%d'%r]}")
                if b == 0: A.wait_vm(f"wq{st}")
                c = "0" if st == 0 else v(D+4*b, 4)
                I(f"v_mfma_f32_16x16x32_bf16 {v(D+4*b,4)}, {v(W2+4*st,4)}, {v(B,4)}, {c}")
        I(f"s_mov_b64 exec, s[{sVal}:{sVal+1}]")
        for b in range(2):
            I(f"ds_write_b128 v{R['PW']}, {v(D+4*b,4)} offset:{b*256}")
        I("s_mov_b64 exec, -1")
        I(f"v_and_b32 v{T}, 32, v{L}")
        I(f"v_and_b32 v{T+1}, 7, v{L}")
        I(f"v_lshl_add_u32 v{T}, v{T+1}, 2, v{T}")
        I(f"v_bfe_u32 v{T+1}, v{L}, 3, 2")
        I(f"v_add_u32 v{T}, v{T}, v{T+1}")
        I(f"s_and_b32 s{sT1}, s{sW}, 1")
        I(f"s_lshl_b32 s{sT0}, s{sT1}, 8")
        I(f"s_add_u32 s{sT0}, s{sT0}, {LVP}")
        I(f"v_lshl_add_u32 v{T}, v{T}, 2, s{sT0}")
        A.wait_lgkm(0)
        I("s_barrier")
        for i in range(4):
            I(f"ds_read2st64_b32 {v(T+4+2*i,2)}, v{T} offset0:{6*i} offset1:{6*i+3}")
        I(f"s_mul_i32 s{sT0}, s{sW}, 1280")
        I(f"v_lshl_add_u32 v{T+1}, v{L}, 1, s{sT0}")
        I(f"v_lshl_add_u32 v{T+2}, v{L}, 4, s{sT0}")
        A.wait_lgkm(0)
        for i in range(4):
            I(f"v_add_f32 v{T+4+2*i}, v{T+4+2*i}, v{T+5+2*i}")
        I(f"v_add_f32 v{T+4}, v{T+4}, v{T+6}")
        I(f"v_add_f32 v{T+8}, v{T+8}, v{T+10}")
        I(f"v_add_f32 v{T+4}, v{T+4}, v{T+8}")
        I(f"v_cvt_pk_bf16_f32 v{T+4}, v{T+4}, v{T+4}")
        I(f"ds_write_b16 v{T+1}, v{T+4} offset:{XD}")
        A.wait_lgkm(0)
        I(f"ds_read_b128 {v(T+4,4)}, v{T+2} offset:{XD}")
        I(f"s_mul_i32 s{sT0}, s{sW}, 12288")
        I(f"s_lshl_b32 s{sT1}, s2, 7")
        I(f"s_add_u32 s{sT0}, s{sT0}, s{sT1}")
        I(f"s_cmp_lt_u32 s{sW}, 2")
        I(f"s_cselect_b32 s{sT0}, s{sT0}, {OOB}")
        I(f"v_mov_b32 v{T+1}, {OOB}")
        I(f"v_cmp_gt_u32 vcc, 8, v{L}")
        I(f"v_cndmask_b32 v{T+1}, v{T+1}, v{R['StL']}, vcc")
        A.wait_lgkm(0)
        I(f"buffer_store_dwordx4 {v(T+4,4)}, v{T+1}, s[{S_WS}:{S_WS+3}], s{sT0} offen offset:{WS_Q} sc1", tag="qst")
        if self.fused():
            A.wait_vm("qst")
            I("s_barrier")
            I(f"buffer_atomic_add v{R['One']}, v{R['T0']}, s[{S_DB}:{S_DB+3}], 0 offen offset:{DB_Q} sc1")

    def q_fetch(self):
        A, I, R = self.A, self.A.I, self.R
        T, Q = R["T"], R["Q"]
        if self.fused():
            lp, dn = A.uniq("L_qpoll"), A.uniq("L_qdone")
            I(f"s_cmp_lg_u32 s{sW}, 0")
            I(f"s_cbranch_scc1 {dn}")
            I(f"v_mov_b32 v{T+1}, {DB_Q}")
            A.label(lp)
            I(f"buffer_load_dword v{T+2}, v{T+1}, s[{S_DB}:{S_DB+3}], 0 offen sc1")
            A.wait_vm0()
            I(f"v_readfirstlane_b32 s{sT0}, v{T+2}")
            I(f"s_cmp_ge_u32 s{sT0}, 96")
            I(f"s_cbranch_scc1 {dn}")
            self.spin_check(lp, dn, 0, sleep=4)
            A.label(dn)
            I("s_barrier")
        I(f"v_lshlrev_b32 v{T}, 4, v0")
        I(f"s_mov_b32 s{sT0}, 0")
        for i in range(6):
            I(f"buffer_load_dwordx4 {v(Q+4*i,4)}, v{T}, s[{S_WS}:{S_WS+3}], s{sT0} offen offset:{WS_Q} sc1", tag=f"qf{i}")
            if i < 5: I(f"s_add_u32 s{sT0}, s{sT0}, 4096")
        A.wait_vm0()
        for i in range(6):
            I(f"ds_write_b128 v{T}, {v(Q+4*i,4)} offset:{LQ+4096*i}")
        A.wait_lgkm(0)
        I("s_barrier")

    def k_item(self, slot, par, nxt, signal=None, post=None):
        A, I, R = self.A, self.A.I, self.R
        T, D, Q = R["T"], R["D"], R["Q"]
        lb = par * 320
        I(f"s_lshr_b32 s{sH384}, s{sCur}, 7")
        I(f"s_mul_i32 s{sH384}, s{sH384}, 384")
        I(f"v_mad_u32_u24 v{R['Qa']}, v{R['Qsel']}, s{sH384}, v{R['Qbase']}")
        for i in range(6):
            I(f"ds_read_b128 {v(Q+4*i,4)}, v{R['Qa']} offset:{64*i}")
        for i in range(6):
            A.wait_vm(f"ld{slot}_{2*i+1}", lgkm=5 - i)
            for u in range(2):
                r = slot * 48 + (i * 2 + u) * 4
                c = "0" if i == 0 else v(D+4*u, 4)
                I(f"v_mfma_f32_16x16x32_bf16 {v(D+4*u,4)}, {a(r,4)}, {v(Q+4*i,4)}, {c}")
        nxt()
        D0, D1 = D, D + 4
        I(f"v_add_f32_dpp v{T}, v{D0+1}, v{D0} quad_perm:[1,1,1,1] {DPPM}")
        I(f"v_add_f32_dpp v{T+1}, v{D0+3}, v{D0+2} quad_perm:[3,3,3,3] {DPPM}")
        I(f"v_add_f32_dpp v{T+2}, v{D1}, v{D1+1} quad_perm:[0,0,0,0] {DPPM}")
        I(f"v_add_f32_dpp v{T+3}, v{D1+2}, v{D1+3} quad_perm:[2,2,2,2] {DPPM}")
        I(f"v_cndmask_b32 v{T}, v{T}, v{T+2}, s[{sOdd}:{sOdd+1}]")
        I(f"v_cndmask_b32 v{T+1}, v{T+1}, v{T+3}, s[{sOdd}:{sOdd+1}]")
        I(f"v_add_f32_dpp v{T}, v{T+1}, v{T} quad_perm:[2,3,2,3] {DPPM}")
        I(f"v_mov_b32_dpp v{T+1}, v{T} quad_perm:[0,1,0,1] {DPPM}")
        self.bf16r(T+1, T+1)
        I(f"v_mul_f32 v{T+1}, {SCALE}, v{T+1}")
        self.bf16r(T+1, T+1)
        I(f"ds_write_b16_d16_hi v{R['ScW']}, v{T+1} offset:{lb}")
        I(f"v_mov_b32 v{T+2}, v{T+1}")
        self.wave_red("v_max_f32", [T+2], skip2=True)
        I(f"v_readlane_b32 s{sM}, v{T+2}, 63")
        A.wait_lgkm(0)
        I(f"ds_read_b128 {v(T+4,4)}, v{R['ScR']} offset:{lb}")
        I(f"v_subrev_f32 v{T+3}, s{sM}, v{T+1}")
        I(f"v_mul_f32 v{T+3}, {LOG2E}, v{T+3}")
        I(f"v_exp_f32 v{T+3}, v{T+3}")
        self.wave_red("v_add_f32", [T+3], skip2=True)
        I(f"s_lshl_b32 s{sT0}, s{sW}, 3")
        I(f"v_mov_b32 v{T}, s{sT0}")
        I(f"s_mov_b64 exec, s[{sL63}:{sL63+1}]")
        I(f"ds_write_b64 v{T}, {v(T+2,2)} offset:{LKS+lb+256}")
        I("s_mov_b64 exec, -1")
        I(f"s_lshl_b32 s{sT0}, s{sCur}, 8")
        I(f"s_add_u32 s{sT0}, s{sT0}, {WS_S}")
        I(f"v_mov_b32 v{T}, 0")
        A.wait_lgkm(0)
        I(f"buffer_store_dwordx4 {v(T+4,4)}, v{R['ScG']}, s[{S_WS}:{S_WS+3}], s{sT0} offen sc1", tag="kst")
        if post: post()
        I("s_barrier")
        I(f"ds_read_b128 {v(T+8,4)}, v{T} offset:{LKS+lb+256}")
        I(f"ds_read_b128 {v(T+12,4)}, v{T} offset:{LKS+lb+272}")
        if signal: signal()
        I(f"s_lshl_b32 s{sT0}, s{sCur}, 3")
        I(f"s_add_u32 s{sT0}, s{sT0}, {WS_ST}")
        A.wait_lgkm(0)
        I(f"v_max3_f32 v{T+16}, v{T+8}, v{T+10}, v{T+12}")
        I(f"v_max_f32 v{T+16}, v{T+16}, v{T+14}")
        for w in range(4):
            I(f"v_sub_f32 v{T+8+2*w}, v{T+8+2*w}, v{T+16}")
        for w in range(4):
            I(f"v_mul_f32 v{T+8+2*w}, {LOG2E}, v{T+8+2*w}")
        for w in range(4):
            I(f"v_exp_f32 v{T+8+2*w}, v{T+8+2*w}")
        I(f"v_mul_f32 v{T+17}, v{T+8}, v{T+9}")
        for w in range(1, 4):
            I(f"v_fmac_f32 v{T+17}, v{T+8+2*w}, v{T+9+2*w}")
        I(f"buffer_store_dwordx2 {v(T+16,2)}, v{R['T0']}, s[{S_WS}:{S_WS+3}], s{sT0} offen sc1", tag="kst")
        I(f"s_add_u32 s{sCur}, s{sCur}, 256")

    def kc_load(self):
        I, R = self.A.I, self.R
        I(f"s_cmp_lt_u32 s{sKdone}, 8")
        I(f"s_cselect_b32 s{sT3}, 0, {OOB}")
        I(f"buffer_load_dword v{R['Kc']}, v{R['KcO']}, s[{S_DB}:{S_DB+3}], s{sT3} offen sc1", tag="kc")

    def kc_use(self):
        I, R = self.A.I, self.R
        I(f"v_cmp_eq_u32 vcc, 0x100, v{R['Kc']}")
        I(f"s_ff0_i32_b32 s{sT3}, vcc_lo")
        I(f"s_max_u32 s{sKdone}, s{sKdone}, s{sT3}")

    def kgroup_check(self, slot):
        A, I, R = self.A, self.A.I, self.R
        if not self.fused(): return
        slow, back = A.uniq("L_kslow"), A.uniq("L_kback")
        I(f"s_lshr_b32 s{sT0}, s{sIdx+slot}, 10")
        I(f"s_min_u32 s{sT0}, s{sT0}, 7")
        I(f"s_cmp_ge_u32 s{sT0}, s{sKdone}")
        I(f"s_cbranch_scc1 {slow}")
        A.label(back)
        if not A.dry:
            def ool():
                T = R["T"]
                A.label(slow)
                I(f"buffer_load_dword v{T+19}, v{R['KcO']}, s[{S_DB}:{S_DB+3}], 0 offen sc1")
                A.wait_vm0()
                I(f"v_cmp_eq_u32 vcc, 0x100, v{T+19}")
                I(f"s_ff0_i32_b32 s{sT3}, vcc_lo")
                I(f"s_max_u32 s{sKdone}, s{sKdone}, s{sT3}")
                I(f"s_cmp_lt_u32 s{sT0}, s{sKdone}")
                I(f"s_cbranch_scc1 {back}")
                I(f"s_add_u32 s{sSpin}, s{sSpin}, 1")
                I(f"s_cmp_lt_u32 s{sSpin}, {self.c.spin_max}")
                I("s_sleep 4")
                I(f"s_cbranch_scc1 {slow}")
                I(f"v_mov_b32 v{T+19}, {DB_ERR+4}")
                I(f"buffer_atomic_add v{R['One']}, v{T+19}, s[{S_DB}:{S_DB+3}], 0 offen sc1")
                I(f"s_branch {back}")
            self.ool.append(ool)

    def ksignal(self, grp_sreg=None, grp=None):
        I, R = self.A.I, self.R
        if grp is not None:
            I(f"buffer_atomic_add v{R['One']}, v{R['T0']}, s[{S_DB}:{S_DB+3}], 0 offen offset:{DB_K+4*grp} sc1", tag="sig")
        else:
            I(f"buffer_atomic_add v{R['One']}, v{R['T0']}, s[{S_DB}:{S_DB+3}], s{grp_sreg} offen offset:{DB_K} sc1", tag="sig")

    def next_v_index(self, slot):
        I, c = self.A.I, self.c
        ix = sIdx + slot
        I(f"s_lshl_b32 s{sT0}, s{sSeq}, 8")
        I(f"s_add_u32 s{sT0}, s{sT0}, s2")
        I(f"s_mul_i32 s{sT1}, s{sTk}, {c.NCLS}")
        I(f"s_add_u32 s{sT1}, s{sT1}, s{sCls}")
        I(f"s_add_u32 s{sT1}, s{sT1}, {c.NS*256}")
        I(f"s_cmp_lt_u32 s{sSeq}, {c.NS}")
        I(f"s_cselect_b32 s{ix}, s{sT0}, s{sT1}")
        I(f"s_add_u32 s{sSeq}, s{sSeq}, 1")

    def k_phase(self):
        A, I, R, c = self.A, self.A.I, self.R, self.c
        RK, RV = c.RK, c.RV
        assert RK == 4
        fz = self.fused()
        I(f"s_mov_b32 s{sCur}, s2")
        I(f"s_mov_b32 s{sCnt}, 0")
        I(f"s_mov_b32 s{sKdone}, {0 if fz else 8}")
        I(f"v_mov_b32 v{R['Kc']}, 0")
        I(f"s_mov_b32 s{sSeq}, 0")
        I(f"s_mov_b32 s{sTk}, 0")
        lp = A.uniq("L_kloop")
        A.raw(".p2align 6")
        A.label(lp)
        def nxt(slot):
            def f():
                I(f"s_add_u32 s{sT0}, s{sCur}, {256*RK}")
                I(f"s_mul_i32 s{sT0}, s{sT0}, {ITEM_B}")
                self.k_loads(slot, sT0)
            return f
        def sig():
            I(f"s_sub_u32 s{sT1}, s{sCnt}, 2")
            I(f"s_lshl_b32 s{sT1}, s{sT1}, 2")
            I(f"s_cmp_ge_u32 s{sCnt}, 2")
            I(f"s_cselect_b32 s{sT1}, s{sT1}, {OOB}")
            self.ksignal(grp_sreg=sT1)
            self.kc_load()
        def body():
            for sl in range(RK):
                self.k_item(sl, sl & 1, nxt(sl), signal=sig if (fz and sl == 0) else None)
            I(f"s_add_u32 s{sCnt}, s{sCnt}, 1")
            I(f"s_cmp_lt_u32 s{sCnt}, 7")
        A.loop(body)
        I(f"s_cbranch_scc1 {lp}")
        withv = "v" in self.ph
        for sl in range(RK):
            vs = sl - (RK - RV)
            def nx():
                if withv and vs >= 0:
                    if fz:
                        self.kc_use()
                    self.next_v_index(vs)
                    self.kgroup_check(vs)
                    self.v_loads(vs)
            def sg():
                self.ksignal(grp=5)
                self.kc_load()
            self.k_item(sl, sl & 1, nx, signal=sg if (fz and sl == 0) else None)

    def v_item(self, slot, par, exit_lbl, sig_grp=None, first=False):
        A, I, R, c = self.A, self.A.I, self.R, self.c
        T, D, Q = R["T"], R["D"], R["Q"]
        RV = c.RV
        St, Sc = R["St"] + 4 * slot, R["Sc"] + 2 * slot
        lb = par * 6144
        fz = self.fused()
        I(f"s_cmp_ge_u32 s{sIdx+slot}, {NITEMS}")
        I(f"s_cbranch_scc1 {exit_lbl}")
        I(f"s_mov_b32 s{sCur}, s{sIdx+slot}")
        A.wait_vm(f"sc{slot}")
        I(f"v_max_f32 v{T}, v{St}, v{St+2}")
        self.wave_red("v_max_f32", [T])
        I(f"v_readlane_b32 s{sM}, v{T}, 63")
        I(f"v_lshlrev_b32 v{T+4}, 16, v{Sc}")
        I(f"v_and_b32 v{T+5}, 0xffff0000, v{Sc}")
        I(f"v_lshlrev_b32 v{T+6}, 16, v{Sc+1}")
        I(f"v_and_b32 v{T+7}, 0xffff0000, v{Sc+1}")
        I(f"v_subrev_f32 v{T+1}, s{sM}, v{St}")
        I(f"v_subrev_f32 v{T+2}, s{sM}, v{St+2}")
        for u in range(4):
            I(f"v_subrev_f32 v{T+4+u}, s{sM}, v{T+4+u}")
        for r in (T+1, T+2, T+4, T+5, T+6, T+7):
            I(f"v_mul_f32 v{r}, {LOG2E}, v{r}")
        for r in (T+1, T+2, T+4, T+5, T+6, T+7):
            I(f"v_exp_f32 v{r}, v{r}")
        I(f"v_mul_f32 v{T+1}, v{T+1}, v{St+1}")
        I(f"v_fmac_f32 v{T+1}, v{T+2}, v{St+3}")
        self.wave_red("v_add_f32", [T+1])
        I(f"v_readlane_b32 s{sL}, v{T+1}, 63")
        I(f"v_rcp_f32 v{T+2}, s{sL}")
        for u in range(4):
            I(f"v_mul_f32 v{T+4+u}, v{T+4+u}, v{T+2}")
        for u in range(4):
            I(f"v_cvt_pk_bf16_f32 v{T+4+u}, v{T+4+u}, v{T+4+u}")
        for u in range(4):
            for r in range(4):
                I(f"v_and_b32 v{Q+4*u+r}, v{T+4+u}, v{R['M%d'%r]}")
        for u in range(4):
            A.wait_vm(f"ld{slot}_{3*u+2}")
            for l in range(3):
                r = slot * 48 + (u * 3 + l) * 4
                cc = "0" if u == 0 else v(D+4*l, 4)
                I(f"v_mfma_f32_16x16x32_bf16 {v(D+4*l,4)}, {a(r,4)}, {v(Q+4*u,4)}, {cc}")
        if fz:
            self.kc_use()
        self.next_v_index(slot)
        self.kgroup_check(slot)
        self.v_loads(slot)
        I(f"s_mov_b64 exec, s[{sVal}:{sVal+1}]")
        for l in range(3):
            I(f"ds_write_b128 v{R['PW']}, {v(D+4*l,4)} offset:{lb+256*l}")
        I("s_mov_b64 exec, -1")
        tkreg = R["Tk%d" % ((slot + 1) % RV)]
        A.wait_vm(f"tk{(slot+1)%RV}")
        I(f"v_mov_b32 v{T}, {LTK + 4*par}")
        I(f"v_cmp_eq_u32 vcc, 0, v0")
        I("s_mov_b64 exec, vcc")
        I(f"ds_write_b32 v{T}, v{tkreg}")
        I("s_mov_b64 exec, -1")
        if sig_grp is not None:
            A.wait_vm("kst")
        A.wait_lgkm(0)
        I("s_barrier")
        for i in range(4):
            I(f"ds_read2st64_b32 {v(T+4+2*i,2)}, v{R['PR']} offset0:{lb//256+6*i} offset1:{lb//256+6*i+3}")
        I(f"ds_read_b32 v{T+1}, v{T}")
        if sig_grp is not None:
            for g_ in sig_grp: self.ksignal(grp=g_)
        if fz:
            self.kc_load()
        I(f"s_lshl_b32 s{sT0}, s{sCls}, 8")
        I(f"s_add_u32 s{sT0}, s{sT0}, {WS_TK}")
        I(f"s_cmp_ge_u32 s{sSeq}, {c.NS - RV + 1}")
        I(f"s_cselect_b32 s{sT0}, s{sT0}, {OOB}")
        tk = R["Tk%d" % slot]
        I(f"v_mov_b32 v{tk}, 1")
        I(f"buffer_atomic_add v{tk}, v{R['T0']}, s[{S_WS}:{S_WS+3}], s{sT0} offen sc0 sc1", tag=f"tk{slot}")
        I(f"s_lshr_b32 s{sT0}, s{sCur}, 7")
        I(f"s_lshl_b32 s{sT0}, s{sT0}, 2")
        I(f"s_and_b32 s{sT1}, s{sCur}, 3")
        I(f"s_add_u32 s{sT0}, s{sT0}, s{sT1}")
        I(f"s_lshl_b32 s{sT0}, s{sT0}, 10")
        I(f"s_add_u32 s{sT0}, s{sT0}, {WS_OACC}")
        A.wait_lgkm(0)
        I(f"v_readfirstlane_b32 s{sTk}, v{T+1}")
        for i in range(4):
            I(f"v_add_f32 v{T+4+2*i}, v{T+4+2*i}, v{T+5+2*i}")
        I(f"v_add_f32 v{T+4}, v{T+4}, v{T+6}")
        I(f"v_add_f32 v{T+8}, v{T+8}, v{T+10}")
        I(f"v_add_f32 v{T+4}, v{T+4}, v{T+8}")
        I(f"v_cndmask_b32 v{T+4}, v{T+4}, 1.0, s[{sP3}:{sP3+1}]")
        I(f"buffer_atomic_add_f32 v{T+4}, v{R['AtO']}, s[{S_WS}:{S_WS+3}], s{sT0} offen sc1", tag="oacc")

    def v_phase(self):
        A, I, R, c = self.A, self.A.I, self.R, self.c
        RV = c.RV
        fz = self.fused()
        for i in range(RV):
            I(f"v_mov_b32 v{R['Tk%d'%i]}, 0")
        if "k" not in self.ph:
            I(f"s_mov_b32 s{sKdone}, 8"); I(f"s_mov_b32 s{sSeq}, 0"); I(f"s_mov_b32 s{sTk}, 0")
            for sl in range(RV):
                self.next_v_index(sl); self.v_loads(sl)
        ex = A.uniq("L_vexit")
        per = RV if RV % 2 == 0 else 2 * RV
        n = 0
        if fz:
            for n in range(per):
                self.v_item(n % RV, n & 1, ex, sig_grp=(6, 7) if n == 0 else None)
        lp = A.uniq("L_vloop")
        A.raw(".p2align 6")
        A.label(lp)
        def body():
            for n in range(per):
                self.v_item(n % RV, n & 1, ex)
        A.loop(body)
        I(f"s_branch {lp}")
        A.label(ex)
        A.vub = 63

    def t1_loads(self):
        A, I, R = self.A, self.A.I, self.R
        T, W1, L = R["T"], R["W1"], R["lane"]
        self.srd(S_T, P_WO, 6144 * 1280)
        self.t1_ids()
        I(f"s_mul_i32 s{sT2}, s{sT0}, {192*1280}")
        I(f"s_lshl_b32 s{sT3}, s{sT1}, 8")
        I(f"s_add_u32 s{sT2}, s{sT2}, s{sT3}")
        I(f"s_mul_i32 s{sT3}, s{sW}, {48*1280}")
        I(f"v_lshrrev_b32 v{T}, 4, v{L}")
        I(f"v_mul_u32_u24 v{T}, {12*1280}, v{T}")
        I(f"v_and_b32 v{T+1}, 15, v{L}")
        I(f"v_lshlrev_b32 v{T+1}, 4, v{T+1}")
        I(f"v_add3_u32 v{T}, v{T}, v{T+1}, s{sT3}")
        for st in range(12):
            I(f"buffer_load_dwordx4 {v(W1+4*st,4)}, v{T}, s[{S_T}:{S_T+3}], s{sT2} offen offset:{(st%4)*1280} {self.c.nt}", tag="w1")
            if st % 4 == 3 and st < 11: I(f"s_add_u32 s{sT2}, s{sT2}, 5120")

    def t1_ids(self):
        I = self.A.I
        I(f"s_sub_u32 s{sT1}, s2, 96")
        I(f"s_mul_i32 s{sT0}, s{sT1}, 52429")
        I(f"s_lshr_b32 s{sT0}, s{sT0}, 18")
        I(f"s_mul_i32 s{sT2}, s{sT0}, 5")
        I(f"s_sub_u32 s{sT1}, s{sT1}, s{sT2}")

    def t1(self):
        A, I, R = self.A, self.A.I, self.R
        T, W1, L, D, Q, St = R["T"], R["W1"], R["lane"], R["D"], R["Q"], R["St"]
        skip = A.uniq("L_t1skip")
        I("s_cmp_lt_u32 s2, 96")
        I(f"s_cbranch_scc1 {skip}")
        self.t1_ids()
        I(f"s_mov_b32 s{sT4}, s{sT1}")
        I(f"s_lshl_b32 s{sT0}, s{sT0}, 12")
        I(f"s_lshl_b32 s{sT2}, s{sW}, 8")
        I(f"s_add_u32 s{sT0}, s{sT0}, s{sT2}")
        I(f"s_add_u32 s{sT0}, s{sT0}, {WS_OACC}")
        I(f"s_add_u32 s{sT1}, s{sT0}, {32*4096}")
        I(f"v_lshrrev_b32 v{T+1}, 4, v{L}")
        I(f"v_and_b32 v{T+2}, 15, v{L}")
        I(f"v_lshlrev_b32 v{T+3}, 4, v{T+2}")
        I(f"v_lshl_add_u32 v{T+3}, v{T+1}, 10, v{T+3}")
        I(f"s_mul_i32 s{sT2}, s{sW}, 384")
        I(f"s_add_u32 s{sT2}, s{sT2}, {LT+6144}")
        I(f"v_mul_u32_u24 v{T+2}, 12, v{T+2}")
        I(f"v_add_u32 v{T+2}, s{sT2}, v{T+2}")
        I(f"v_mul_u32_u24 v{T+1}, 48, v{T+1}")
        I(f"v_bfe_u32 v{T+12}, v{L}, 3, 1")
        I(f"v_mul_u32_u24 v{T+12}, 192, v{T+12}")
        I(f"v_add3_u32 v{T+1}, v{T+1}, v{T+12}, s{sT2}")
        I(f"s_mov_b32 s{sT5}, {f32(32.0)}")
        lp, dn = A.uniq("L_t1poll"), A.uniq("L_t1done")
        A.label(lp)
        I(f"buffer_load_dwordx4 {v(T+4,4)}, v{T+3}, s[{S_WS}:{S_WS+3}], s{sT0} offen sc1")
        I(f"buffer_load_dwordx4 {v(T+8,4)}, v{T+3}, s[{S_WS}:{S_WS+3}], s{sT1} offen sc1")
        A.wait_vm0()
        I(f"v_cmp_eq_f32 s[{sC0}:{sC0+1}], s{sT5}, v{T+7}")
        I(f"v_cmp_eq_f32 s[{sC1}:{sC1+1}], s{sT5}, v{T+11}")
        I(f"s_and_b64 s[{sC0}:{sC0+1}], s[{sC0}:{sC0+1}], s[{sC1}:{sC1+1}]")
        I(f"s_cmp_eq_u64 s[{sC0}:{sC0+1}], -1")
        I(f"s_cbranch_scc1 {dn}")
        self.spin_check(lp, dn, 2, sleep=1)
        A.label(dn)
        for b in range(2):
            for p in range(3):
                I(f"ds_add_f32 v{T+2}, v{T+4+4*b+p} offset:{192*b+4*p}")
        A.wait_lgkm(0)
        for i in range(3):
            I(f"ds_read_b128 {v(St+4*i,4)}, v{T+1} offset:{16*i}")
        I(f"v_lshrrev_b32 v{T+12}, 2, v0")
        I(f"v_lshrrev_b32 v{T+13}, 5, v{T+12}")
        I(f"v_lshlrev_b32 v{T+13}, 8, v{T+13}")
        I(f"v_and_b32 v{T+14}, 1, v0")
        I(f"v_lshl_add_u32 v{T+13}, v{T+14}, 7, v{T+13}")
        I(f"v_and_b32 v{T+14}, 7, v{T+12}")
        I(f"v_lshl_add_u32 v{T+13}, v{T+14}, 4, v{T+13}")
        I(f"v_bfe_u32 v{T+14}, v{T+12}, 3, 2")
        I(f"v_lshl_add_u32 v{T+13}, v{T+14}, 2, v{T+13}")
        I(f"v_add_u32 v{T+13}, {LT}, v{T+13}")
        I(f"v_lshlrev_b32 v{T+12}, 4, v0")
        I(f"v_mov_b32 v{T+14}, {OOB}")
        I(f"v_cndmask_b32 v{T+14}, v{R['AtO']}, v{T+14}, s[{sP3}:{sP3+1}]")
        I(f"s_lshl_b32 s{sT0}, s{sT4}, 11")
        I(f"s_add_u32 s{sT0}, s{sT0}, {WS_AACC}")
        A.wait_lgkm(0)
        for st in range(12):
            I(f"v_cvt_pk_bf16_f32 v{St+st}, v{St+st}, v{St+st}")
        for st in range(12):
            B = Q + 4 * (st % 4)
            for r in range(4):
                I(f"v_and_b32 v{B+r}, v{St+st}, v{R['M%d'%r]}")
            cc = "0" if st < 2 else v(D+4*(st&1), 4)
            I(f"v_mfma_f32_16x16x32_bf16 {v(D+4*(st&1),4)}, {v(W1+4*st,4)}, {v(B,4)}, {cc}")
        for r in range(4):
            I(f"v_add_f32 v{D+r}, v{D+r}, v{D+4+r}")
        I(f"ds_write_b128 v{T+12}, {v(D,4)} offset:{LT}")
        A.wait_lgkm(0)
        I("s_barrier")
        for i in range(2):
            I(f"ds_read2st64_b32 {v(T+4*i,2)}, v{T+13} offset0:{2*i} offset1:{2*i+4}")
            I(f"ds_read2st64_b32 {v(T+4*i+2,2)}, v{T+13} offset0:{2*i+8} offset1:{2*i+12}")
        A.wait_lgkm(0)
        for i in range(2):
            I(f"v_add_f32 v{T+4*i}, v{T+4*i}, v{T+4*i+1}")
            I(f"v_add_f32 v{T+4*i+2}, v{T+4*i+2}, v{T+4*i+3}")
        for i in range(2):
            I(f"v_add_f32 v{T+4*i}, v{T+4*i}, v{T+4*i+2}")
        for i in range(2):
            I(f"v_cndmask_b32 v{T+4*i}, v{T+4*i}, 1.0, s[{sP2}:{sP2+1}]")
        for i in range(2):
            I(f"buffer_atomic_add_f32 v{T+4*i}, v{T+14}, s[{S_WS}:{S_WS+3}], s{sT0} offen offset:{1024*i} sc1")
        I("s_barrier")
        A.label(skip)
        A.vub = 63

    def tw_loads(self, nks, frags, rowb, srcs):
        A, I, R = self.A, self.A.I, self.R
        T, W2 = R["T"], R["W2"]
        groups = []
        for si, (ptr, size) in enumerate(srcs):
            for ks in range(nks):
                groups.append((si, ks))
        def base(si, ks): return W2 + (ks * len(srcs) + si) * 8
        def issue(si, ks):
            if ks == 0:
                self.srd(S_T, srcs[si][0], srcs[si][1])
                I(f"s_mov_b32 s{sT3}, s{sT2}")
            for j in range(8):
                r = base(si, ks) + (j >> 1) + 4 * (j & 1)
                I(f"buffer_load_dword v{r}, v{T}, s[{S_T}:{S_T+3}], s{sT3} offen", tag=f"tw{si}_{ks}")
                I(f"s_add_u32 s{sT3}, s{sT3}, {rowb if j < 7 else rowb*25}")
        def perm(si, ks):
            A.wait_vm(f"tw{si}_{ks}")
            b = base(si, ks)
            for i in range(4):
                I(f"v_perm_b32 v{T+1}, v{b+4+i}, v{b+i}, s{sPermLo}")
                I(f"v_perm_b32 v{b+4+i}, v{b+4+i}, v{b+i}, s{sPermHi}")
                I(f"v_mov_b32 v{b+i}, v{T+1}")
        AHEAD = 6
        for n, g in enumerate(groups):
            issue(*g)
            if n >= AHEAD: perm(*groups[n - AHEAD])
        self._tw_pending = [groups[n] for n in range(max(0, len(groups) - AHEAD), len(groups))]
        self._tw_perm = perm

    def tw_finish(self):
        for g in self._tw_pending: self._tw_perm(*g)

    def t2_loads(self):
        I, R = self.A.I, self.R
        T, L = R["T"], R["lane"]
        I(f"s_sub_u32 s{sT2}, s2, 96")
        I(f"s_lshl_b32 s{sT2}, s{sT2}, 6")
        I(f"s_mul_i32 s{sT3}, s{sW}, {160*3072}")
        I(f"v_lshrrev_b32 v{T}, 4, v{L}")
        I(f"v_mul_u32_u24 v{T}, {8*3072}, v{T}")
        I(f"v_and_b32 v{T+1}, 15, v{L}")
        I(f"v_lshlrev_b32 v{T+1}, 2, v{T+1}")
        I(f"v_add3_u32 v{T}, v{T}, v{T+1}, s{sT3}")
        self.tw_loads(5, 4, 3072, [(P_WG, 640*3072), (P_WU, 640*3072)])

    def t3_loads(self):
        I, R = self.A.I, self.R
        T, L = R["T"], R["lane"]
        I(f"s_sub_u32 s{sT2}, s2, 144")
        I(f"s_lshl_b32 s{sT2}, s{sT2}, 6")
        I(f"s_mul_i32 s{sT3}, s{sW}, {384*1280}")
        I(f"v_lshrrev_b32 v{T}, 4, v{L}")
        I(f"v_mul_u32_u24 v{T}, {8*1280}, v{T}")
        I(f"v_and_b32 v{T+1}, 15, v{L}")
        I(f"v_lshlrev_b32 v{T+1}, 2, v{T+1}")
        I(f"v_add3_u32 v{T}, v{T}, v{T+1}, s{sT3}")
        self.tw_loads(12, 2, 1280, [(P_WD, 1536*1280)])

    def t2(self):
        A, I, R = self.A, self.A.I, self.R
        T, W1, W2, L, D, Q, St = R["T"], R["W1"], R["W2"], R["lane"], R["D"], R["Q"], R["St"]
        skip = A.uniq("L_t2skip")
        I(f"s_sub_u32 s{sT4}, s2, 96")
        I(f"s_cmp_ge_u32 s{sT4}, 48")
        I(f"s_cbranch_scc1 {skip}")
        X = [[St + 3*b + i for i in range(3)] for b in range(2)]
        G = W1
        self.load_x(X, W1 + 12)
        I(f"s_mul_i32 s{sT0}, s{sW}, 2560")
        I(f"s_add_u32 s{sT0}, s{sT0}, {WS_AACC}")
        I(f"v_mov_b32 v{W1+14}, {OOB}")
        I(f"v_cndmask_b32 v{W1+14}, v{W1+14}, v{R['StL']}, s[{sLo32}:{sLo32+1}]")
        I(f"s_mov_b32 s{sT5}, {f32(32.0)}")
        lp, dn = A.uniq("L_t2poll"), A.uniq("L_t2done")
        A.label(lp)
        for i in range(3):
            I(f"buffer_load_dwordx4 {v(G+4*i,4)}, v{R['StL'] if i < 2 else W1+14}, s[{S_WS}:{S_WS+3}], s{sT0} offen offset:{1024*i} sc1")
        A.wait_vm0()
        I(f"v_cmp_eq_f32 s[{sC0}:{sC0+1}], s{sT5}, v{G+2}")
        I(f"v_cmp_eq_f32 s[{sC1}:{sC1+1}], s{sT5}, v{G+6}")
        I(f"v_cmp_eq_f32 s[{sC2}:{sC2+1}], s{sT5}, v{G+10}")
        I(f"s_and_b64 s[{sC0}:{sC0+1}], s[{sC0}:{sC0+1}], s[{sC1}:{sC1+1}]")
        I(f"s_and_b32 s{sC0}, s{sC0}, s{sC2}")
        I(f"s_cmp_eq_u64 s[{sC0}:{sC0+1}], -1")
        I(f"s_cbranch_scc1 {dn}")
        self.spin_check(lp, dn, 3, sleep=1)
        A.label(dn)
        for b in range(2):
            for i in range(3):
                self.bf16r(G+4*i+b, G+4*i+b)
                I(f"v_lshlrev_b32 v{X[b][i]}, 16, v{X[b][i]}")
        for b in range(2):
            for i in range(3):
                I(f"v_add_f32 v{X[b][i]}, v{X[b][i]}, v{G+4*i+b}")
                self.bf16r(X[b][i], X[b][i])
        self.layernorm(X)
        HD = LT + 64
        I(f"s_mul_i32 s{sT0}, s{sW}, 640")
        I(f"v_lshl_add_u32 v{T}, v{L}, 1, s{sT0}")
        for b in range(2):
            for i in range(2):
                I(f"ds_write_b16 v{T}, v{X[b][i]} offset:{HD+b*320+i*128}")
        I(f"s_mov_b64 exec, s[{sLo32}:{sLo32+1}]")
        for b in range(2):
            I(f"ds_write_b16 v{T}, v{X[b][2]} offset:{HD+b*320+256}")
        I("s_mov_b64 exec, -1")
        I(f"v_and_b32 v{T+1}, 1, v{L}")
        I(f"v_mul_u32_u24 v{T+1}, 320, v{T+1}")
        I(f"v_lshrrev_b32 v{T+2}, 4, v{L}")
        I(f"v_lshlrev_b32 v{T+2}, 4, v{T+2}")
        I(f"v_add3_u32 v{T+1}, v{T+1}, v{T+2}, s{sT0}")
        A.wait_lgkm(0)
        for ks in range(5):
            I(f"ds_read_b128 {v(Q+4*ks,4)}, v{T+1} offset:{HD+64*ks}")
        RD = LT + 4096
        I(f"s_lshl_b32 s{sT0}, s{sW}, 9")
        I(f"v_lshl_add_u32 v{T+2}, v{L}, 2, s{sT0}")
        I(f"v_add_u32 v{T+2}, {RD}, v{T+2}")
        I(f"v_lshlrev_b32 v{T+3}, 2, v{L}")
        for ks in range(5):
            A.wait_lgkm(4 - ks)
            for f in range(4):
                wr = W2 + (ks * 2 + (f >> 1)) * 8 + 4 * (f & 1)
                cc = "0" if ks == 0 else v(D+4*f, 4)
                I(f"v_mfma_f32_16x16x32_bf16 {v(D+4*f,4)}, {v(Q+4*ks,4)}, {v(wr,4)}, {cc}")
        I("s_mov_b64 exec, 0xffff")
        for f in range(4):
            I(f"ds_write2_b32 v{T+2}, v{D+4*f}, v{D+4*f+1} offset0:{32*f} offset1:{32*f+16}")
        I("s_mov_b64 exec, -1")
        A.wait_lgkm(0)
        I("s_barrier")
        dn2 = A.uniq("L_t2end")
        I(f"s_cmp_lg_u32 s{sW}, 0")
        I(f"s_cbranch_scc1 {dn2}")
        for f in range(4):
            for w in range(4):
                I(f"ds_read_b32 v{D+4*f+w}, v{T+3} offset:{RD+512*w+128*f}")
        I(f"v_bfe_u32 v{T+4}, v{L}, 4, 1")
        I(f"v_mul_u32_u24 v{T+4}, 3072, v{T+4}")
        I(f"v_and_b32 v{T+5}, 15, v{L}")
        I(f"v_lshl_add_u32 v{T+4}, v{T+5}, 2, v{T+4}")
        I(f"v_mov_b32 v{T+5}, {OOB}")
        I(f"v_cndmask_b32 v{T+4}, v{T+5}, v{T+4}, s[{sLo32}:{sLo32+1}]")
        I(f"s_lshl_b32 s{sT0}, s{sT4}, 6")
        I(f"s_add_u32 s{sT0}, s{sT0}, {WS_ACT}")
        A.wait_lgkm(0)
        for f in range(4):
            I(f"v_add_f32 v{D+4*f}, v{D+4*f}, v{D+4*f+1}")
            I(f"v_add_f32 v{D+4*f+2}, v{D+4*f+2}, v{D+4*f+3}")
        for f in range(4):
            I(f"v_add_f32 v{D+4*f}, v{D+4*f}, v{D+4*f+2}")
        for f in range(4):
            self.bf16r(D+4*f, D+4*f)
        k0 = math.sqrt(2 / math.pi)
        c0 = -2 * k0 * math.log2(math.e); c1 = c0 * 0.044715
        for e in range(2):
            g, t = D + 4*e, D + 4*e + 1
            I(f"v_mul_f32 v{t}, v{g}, v{g}")
            I(f"v_mul_f32 v{t}, {f32(c1)}, v{t}")
            I(f"v_add_f32 v{t}, {f32(c0)}, v{t}")
            I(f"v_mul_f32 v{t}, v{t}, v{g}")
            I(f"v_exp_f32 v{t}, v{t}")
            I(f"v_add_f32 v{t}, 1.0, v{t}")
            I(f"v_rcp_f32 v{t}, v{t}")
            I(f"v_mul_f32 v{g}, v{g}, v{t}")
            self.bf16r(g, g)
            I(f"v_mul_f32 v{g}, v{g}, v{D+8+4*e}")
        I(f"v_cvt_pk_bf16_f32 v{T+6}, v{D}, v{D+4}")
        I(f"v_mov_b32 v{T+7}, 0x7fff7fff")
        I(f"v_cmp_eq_u32 vcc, -1, v{T+6}")
        I(f"v_cndmask_b32 v{T+6}, v{T+6}, v{T+7}, vcc")
        I(f"buffer_store_dword v{T+6}, v{T+4}, s[{S_WS}:{S_WS+3}], s{sT0} offen sc1")
        A.label(dn2)
        A.label(skip)
        A.vub = 63

    def t3(self):
        A, I, R = self.A, self.A.I, self.R
        T, W1, W2, L, D, Q, St = R["T"], R["W1"], R["W2"], R["lane"], R["D"], R["Q"], R["St"]
        skip = A.uniq("L_t3skip")
        I(f"s_sub_u32 s{sT4}, s2, 144")
        I(f"s_cmp_ge_u32 s{sT4}, 20")
        I(f"s_cbranch_scc1 {skip}")
        self.srd(S_T, P_X, 2560)
        I(f"v_and_b32 v{T+1}, 15, v{L}")
        I(f"v_bfe_u32 v{T+2}, v{L}, 4, 1")
        I(f"v_mul_u32_u24 v{T+3}, 1280, v{T+2}")
        I(f"v_lshl_add_u32 v{T+3}, v{T+1}, 2, v{T+3}")
        I(f"s_lshl_b32 s{sT6}, s{sT4}, 6")
        I(f"buffer_load_dword v{St}, v{T+3}, s[{S_T}:{S_T+3}], s{sT6} offen")
        I(f"v_lshlrev_b32 v{T+1}, 5, v{T+1}")
        I(f"s_lshl_b32 s{sT0}, s{sT4}, 9")
        I(f"s_add_u32 s{sT0}, s{sT0}, {WS_AACC}")
        I(f"s_mov_b32 s{sT5}, {f32(32.0)}")
        I(f"v_cmp_eq_u32 s[{sC2}:{sC2+1}], 1, v{T+2}")
        lp, dn = A.uniq("L_t3pa"), A.uniq("L_t3da")
        A.label(lp)
        I(f"buffer_load_dwordx4 {v(T+4,4)}, v{T+1}, s[{S_WS}:{S_WS+3}], s{sT0} offen sc1")
        I(f"buffer_load_dwordx4 {v(T+8,4)}, v{T+1}, s[{S_WS}:{S_WS+3}], s{sT0} offen offset:16 sc1")
        A.wait_vm0()
        I(f"v_cmp_eq_f32 s[{sC0}:{sC0+1}], s{sT5}, v{T+6}")
        I(f"v_cmp_eq_f32 s[{sC1}:{sC1+1}], s{sT5}, v{T+10}")
        I(f"s_and_b64 s[{sC0}:{sC0+1}], s[{sC0}:{sC0+1}], s[{sC1}:{sC1+1}]")
        I(f"s_cmp_eq_u64 s[{sC0}:{sC0+1}], -1")
        I(f"s_cbranch_scc1 {dn}")
        self.spin_check(lp, dn, 4, sleep=2)
        A.label(dn)
        I(f"v_cndmask_b32 v{T+4}, v{T+4}, v{T+5}, s[{sC2}:{sC2+1}]")
        I(f"v_cndmask_b32 v{T+8}, v{T+8}, v{T+9}, s[{sC2}:{sC2+1}]")
        self.bf16r(T+4, T+4); self.bf16r(T+8, T+8)
        I(f"v_lshlrev_b32 v{St+1}, 16, v{St}")
        I(f"v_and_b32 v{St+2}, 0xffff0000, v{St}")
        I(f"v_add_f32 v{St+1}, v{St+1}, v{T+4}")
        I(f"v_add_f32 v{St+2}, v{St+2}, v{T+8}")
        self.bf16r(St+1, St+1); self.bf16r(St+2, St+2)
        I(f"v_and_b32 v{T+4}, 1, v{L}")
        I(f"v_mul_u32_u24 v{T+4}, 3072, v{T+4}")
        I(f"v_lshrrev_b32 v{T+5}, 4, v{L}")
        I(f"v_lshl_add_u32 v{T+4}, v{T+5}, 4, v{T+4}")
        I(f"v_and_b32 v{T+5}, 14, v{L}")
        I(f"v_cmp_eq_u32 vcc, 0, v{T+5}")
        I(f"v_mov_b32 v{T+5}, {OOB}")
        I(f"v_cndmask_b32 v{T+4}, v{T+5}, v{T+4}, vcc")
        I(f"s_mul_i32 s{sT0}, s{sW}, 768")
        I(f"s_add_u32 s{sT0}, s{sT0}, {WS_ACT}")
        RD = LT + 4096
        I(f"s_lshl_b32 s{sT1}, s{sW}, 8")
        I(f"v_lshl_add_u32 v{T+2}, v{L}, 2, s{sT1}")
        I(f"v_add_u32 v{T+2}, {RD}, v{T+2}")
        I(f"v_lshlrev_b32 v{T+1}, 2, v{L}")
        I(f"v_cndmask_b32 v{T+3}, v{T+5}, v{T+3}, s[{sLo32}:{sLo32+1}]")
        self.srd(S_T, P_OUT, 2560)
        lp, dn = A.uniq("L_t3pb"), A.uniq("L_t3db")
        A.label(lp)
        for ks in range(12):
            I(f"buffer_load_dwordx4 {v(W1+4*ks,4)}, v{T+4}, s[{S_WS}:{S_WS+3}], s{sT0} offen offset:{64*ks} sc1")
        A.wait_vm0()
        for k in range(4):
            I(f"v_max3_u32 v{T+8+k}, v{W1+12*k}, v{W1+12*k+1}, v{W1+12*k+2}")
        for j in range(3, 11, 2):
            for k in range(4):
                I(f"v_max3_u32 v{T+8+k}, v{T+8+k}, v{W1+12*k+j}, v{W1+12*k+j+1}")
        I(f"v_max3_u32 v{T+8}, v{T+8}, v{W1+11}, v{W1+23}")
        I(f"v_max3_u32 v{T+9}, v{T+9}, v{W1+35}, v{W1+47}")
        I(f"v_max3_u32 v{T+8}, v{T+8}, v{T+9}, v{T+10}")
        I(f"v_max_u32 v{T+8}, v{T+8}, v{T+11}")
        I(f"v_cmp_eq_u32 s[{sC0}:{sC0+1}], -1, v{T+8}")
        I(f"s_cmp_eq_u64 s[{sC0}:{sC0+1}], 0")
        I(f"s_cbranch_scc1 {dn}")
        self.spin_check(lp, dn, 5, sleep=1)
        A.label(dn)
        for ks in range(12):
            for f in range(2):
                acc = D + 4 * (2 * (ks & 1) + f)
                cc = "0" if ks < 2 else v(acc, 4)
                I(f"v_mfma_f32_16x16x32_bf16 {v(acc,4)}, {v(W1+4*ks,4)}, {v(W2+8*ks+4*f,4)}, {cc}")
        for f in range(2):
            for r in range(2):
                I(f"v_add_f32 v{D+4*f+r}, v{D+4*f+r}, v{D+8+4*f+r}")
        I("s_mov_b64 exec, 0xffff")
        for f in range(2):
            I(f"ds_write2_b32 v{T+2}, v{D+4*f}, v{D+4*f+1} offset0:{32*f} offset1:{32*f+16}")
        I("s_mov_b64 exec, -1")
        A.wait_lgkm(0)
        I("s_barrier")
        I(f"s_cmp_lg_u32 s{sW}, 0")
        I(f"s_cbranch_scc1 {skip}")
        for f in range(2):
            for w in range(4):
                I(f"ds_read_b32 v{D+4*f+w}, v{T+1} offset:{RD+256*w+128*f}")
        A.wait_lgkm(0)
        for f in range(2):
            I(f"v_add_f32 v{D+4*f}, v{D+4*f}, v{D+4*f+1}")
            I(f"v_add_f32 v{D+4*f+2}, v{D+4*f+2}, v{D+4*f+3}")
        for f in range(2):
            I(f"v_add_f32 v{D+4*f}, v{D+4*f}, v{D+4*f+2}")
        for f in range(2):
            self.bf16r(D+4*f, D+4*f)
            I(f"v_add_f32 v{D+4*f}, v{D+4*f}, v{St+1+f}")
        I(f"v_cvt_pk_bf16_f32 v{T+6}, v{D}, v{D+4}")
        I(f"buffer_store_dword v{T+6}, v{T+3}, s[{S_T}:{S_T+3}], s{sT6} offen")
        A.label(skip)

    def build(self):
        A, I, ph = self.A, self.A.I, self.ph
        kn = self.kname
        A.raw(f".globl {kn}"); A.raw(".p2align 8"); A.raw(f".type {kn},@function"); A.label(kn)
        self.setup()
        if "init" in ph: self.init_ws()
        self.init_lds()
        join = A.uniq("L_join")
        st0 = (list(A.vq), A.vub)
        def role_end():
            I(f"s_branch {join}")
            A.vq, A.vub = list(st0[0]), st0[1]
        kp = self.k_prefetch if "k" in ph else (lambda: None)
        if "q" in ph:
            nq = A.uniq("L_notq")
            I("s_cmp_ge_u32 s2, 96"); I(f"s_cbranch_scc1 {nq}")
            self.q_loads(); kp(); self.q_compute(); role_end()
            A.label(nq)
        else:
            if "k" in ph:
                nq = A.uniq("L_notq")
                I("s_cmp_ge_u32 s2, 96"); I(f"s_cbranch_scc1 {nq}")
                kp(); role_end()
                A.label(nq)
            else:
                I("s_cmp_lt_u32 s2, 96"); I(f"s_cbranch_scc1 {join}")
        if "t1" in ph:
            self.t1_loads()
            st0 = (list(A.vq), A.vub)
        if "t2" in ph:
            n2 = A.uniq("L_not2")
            I("s_cmp_ge_u32 s2, 144"); I(f"s_cbranch_scc1 {n2}")
            self.t2_loads(); kp(); self.tw_finish(); role_end()
            A.label(n2)
        if "t3" in ph:
            n3 = A.uniq("L_not3")
            I("s_cmp_lt_u32 s2, 144"); I(f"s_cbranch_scc1 {n3}")
            I("s_cmp_ge_u32 s2, 164"); I(f"s_cbranch_scc1 {n3}")
            self.t3_loads(); kp(); self.tw_finish(); role_end()
            A.label(n3)
        kp()
        A.label(join)
        A.vq, A.vub = [], 63
        if "k" in ph:
            self.q_fetch()
            self.k_phase()
        else:
            A.wait_vm0(lgkm=0)
            I("s_barrier")
        if "v" in ph: self.v_phase()
        if "t1" in ph: self.t1()
        if "t2" in ph: self.t2()
        if "t3" in ph: self.t3()
        A.label(f"L_end_{kn}")
        I("s_endpgm")
        for f in self.ool: f()
        return A.text()

    def descriptor(self):
        kn = self.kname
        return f""".p2align 6
.amdhsa_kernel {kn}
  .amdhsa_next_free_vgpr 512
  .amdhsa_next_free_sgpr 96
  .amdhsa_accum_offset 256
  .amdhsa_group_segment_fixed_size 0
  .amdhsa_kernarg_size 96
  .amdhsa_user_sgpr_count 2
  .amdhsa_user_sgpr_kernarg_segment_ptr 1
  .amdhsa_system_sgpr_workgroup_id_x 1
.end_amdhsa_kernel
"""

def make(path, mode, **kw):
    cfg = Cfg(**kw)
    if mode == "fused":
        ks = [(NAME + "_kernel", {"fused", "init", "q", "k", "v", "t1", "t2", "t3"})]
    elif mode == "split":
        ks = [("ka_kernel", {"init", "q"}), ("kb_kernel", {"k"}), ("kc_kernel", {"v"}), ("kd_kernel", {"t1"}), ("ke_kernel", {"t2"}), ("kf_kernel", {"t3"})]
    out = HEADER
    if len(ks) == 1:
        out += f"; @launch grid=(256,1,1) block=(256,1,1) lds={LDS_SIZE}\n"
    else:
        for kn, _ in ks:
            out += f"; @launch kernel={kn} grid=(256,1,1) block=(256,1,1) lds={LDS_SIZE}\n"
    out += '.amdgcn_target "amdgcn-amd-amdhsa--gfx950"\n.text\n'
    gens = []
    uc = 0
    for kn, ph in ks:
        g = Gen(cfg, ph, kn)
        g.A.ucount = uc
        out += g.build()
        uc = g.A.ucount
        gens.append(g)
    out += '.section .rodata,"a"\n'
    for g in gens: out += g.descriptor()
    open(path, "w").write(out)
    return gens

if __name__ == "__main__":
    mode = sys.argv[1]; path = sys.argv[2]
    kw = {}
    for x in sys.argv[3:]:
        k, val = x.split("=")
        kw[k] = int(val) if val.lstrip("-").isdigit() else val
    gens = make(path, mode, **kw)
    for g in gens: print(g.kname, "vgprs", g.nv, "maxv", g.A.maxv, "maxa", g.A.maxa, "maxs", g.A.maxs, "lines", len(g.A.out))
```
